```python
import torch

def _softmax(x, axis=-1):
    return torch.softmax(x, dim=axis)
def _gelu(x):
    return torch.nn.functional.gelu(x, approximate="tanh")
def _silu(x):
    return torch.nn.functional.silu(x)
def _sigmoid(x):
    return torch.sigmoid(x)
def _layernorm(x, axis=-1, eps=1e-5):
    m = x.mean(dim=axis, keepdim=True)
    v = x.var(dim=axis, keepdim=True, unbiased=False)
    return (x - m) / torch.sqrt(v + eps)
def _scatter_add(tgt, idx, src, axis=0):
    return tgt.clone().index_add_(axis, idx, src)
def _segment_sum(src, seg, n):
    out = torch.zeros((n,) + src.shape[1:], dtype=src.dtype)
    return out.index_add_(0, seg, src)
def _pad(x, pw):
    flat = tuple(v for pair in reversed(pw) for v in pair)
    return torch.nn.functional.pad(x, flat)

kernel_name = 'standalone__gqa_softmax__near_ridge'

def setup_inputs():

    _w = (lambda a: (lambda t: t.to(torch.bfloat16) if t.is_floating_point() else t)(torch.as_tensor(a)))
    B, Hq, Hkv, Sq, Sk, D = 8, 32, 8, 128, 2048, 128
    return {
        "q": _w((lambda *s: torch.randn(*s, dtype=torch.bfloat16) * 0.8)(B, Hq, Sq, D)),
        "k": _w((lambda *s: torch.randn(*s, dtype=torch.bfloat16) * 0.8)(B, Hkv, Sk, D)),
        "v": _w((lambda *s: torch.randn(*s, dtype=torch.bfloat16) * 0.05)(B, Hkv, Sk, D)),
    }

def reference(q, k, v):
    B, Hq, Sq, D = q.shape
    Hkv = k.shape[1]
    rep = Hq // Hkv
    k = (lambda x, n, axis: torch.repeat_interleave(x, n, dim=axis))(k, rep, axis=1)
    v = (lambda x, n, axis: torch.repeat_interleave(x, n, dim=axis))(v, rep, axis=1)
    scale = D ** -0.5
    scores = torch.einsum("bhqd,bhkd->bhqk", q, k) * scale
    p = _softmax(scores, axis=-1)
    return torch.einsum("bhqk,bhkd->bhqd", p, v)
```

```python
import re

TRANS = ("v_exp_f32", "v_rcp_f32", "v_log_f32", "v_rsq_f32", "v_sqrt_f32")

def regs_of(op):
    op = op.strip()
    op = op.lstrip("-")
    if op.startswith("|") and op.endswith("|"):
        op = op[1:-1]
    m = re.fullmatch(r"([vas])\[(\d+):(\d+)\]", op)
    if m:
        return [f"{m.group(1)}{i}" for i in range(int(m.group(2)), int(m.group(3)) + 1)]
    m = re.fullmatch(r"([vas])(\d+)", op)
    if m:
        return [op]
    if op in ("vcc", "exec"):
        return [op]
    if op == "m0":
        return ["m0"]
    return []

class I:
    def __init__(self, text, **attr):
        self.text = text
        self.attr = attr
        self.parse()
    def parse(self):
        t = self.text.split(";")[0].strip()
        self.reads = set(); self.writes = set(); self.kind = None
        if t.endswith(":") or t.startswith("."):
            self.kind = "label"; self.mn = ""; return
        parts = t.split(None, 1)
        mn = parts[0]; self.mn = mn
        rest = parts[1] if len(parts) > 1 else ""
        ops = []; depth = 0; cur = ""
        for ch in rest:
            if ch == "[": depth += 1
            if ch == "]": depth -= 1
            if ch == "," and depth == 0:
                ops.append(cur.strip()); cur = ""
            else:
                cur += ch
        if cur.strip(): ops.append(cur.strip())
        if ops:
            last = ops[-1].split()
            ops[-1] = last[0] if last else ""
        self.ops = ops
        R = lambda i: regs_of(ops[i]) if i < len(ops) else []
        if mn.startswith("v_mfma"):
            self.kind = "mfma"
            self.D = R(0); self.A = R(1); self.B = R(2); self.C = R(3)
            self.writes |= set(self.D); self.reads |= set(self.A + self.B + self.C)
            self.passes = 4 if "16x16x32" in mn else 8
        elif mn.startswith("v_"):
            self.kind = "trans" if mn.replace("_e32", "").replace("_e64", "") in TRANS else "valu"
            self.writes |= set(R(0))
            for i in range(1, len(ops)): self.reads |= set(R(i))
            if "permlane" in mn and "swap" in mn:
                self.reads |= set(R(0)); self.writes |= set(R(1))
            if mn.startswith("v_fmac") or mn.startswith("v_dot2c") or mn.startswith("v_pk_fmac"):
                self.reads |= set(R(0))
            if mn.startswith("v_cndmask") and len(ops) == 3:
                self.reads.add("vcc")
        elif mn.startswith("ds_read"):
            self.kind = "ds_read"; self.writes |= set(R(0)); self.reads |= set(R(1))
        elif mn.startswith("ds_write"):
            self.kind = "ds_write"
            for i in range(len(ops)): self.reads |= set(R(i))
        elif mn.startswith("global_load_lds"):
            self.kind = "dma"; self.reads |= set(R(0) + R(1)); self.reads.add("m0")
        elif mn.startswith("global_load") :
            self.kind = "vload"; self.writes |= set(R(0)); self.reads |= set(R(1) + R(2))
        elif mn.startswith("global_store"):
            self.kind = "vstore"; self.reads |= set(R(0) + R(1) + R(2)); self.data = R(1)
        elif mn.startswith("buffer_store"):
            self.kind = "vstore"; self.reads |= set(R(0) + R(1) + R(2) + R(3)); self.data = R(0)
        elif mn.startswith("s_load") or mn in ("s_memtime", "s_memrealtime"):
            self.kind = "smem"; self.writes |= set(R(0)); self.reads |= set(R(1))
        elif mn == "s_waitcnt":
            self.kind = "wait"
        elif mn == "s_barrier":
            self.kind = "barrier"
        elif mn == "s_nop":
            self.kind = "nop"; self.n = int(ops[0]) + 1
        elif mn.startswith("s_cbranch") or mn == "s_branch":
            self.kind = "branch"
            if "scc" in mn: self.reads.add("scc")
            if "vcc" in mn: self.reads.add("vcc")
            if "exec" in mn: self.reads.add("exec")
        elif mn in ("s_endpgm", "s_setprio", "s_sleep"):
            self.kind = "misc"
        elif mn.startswith("s_cmp"):
            self.kind = "salu"
            for i in range(len(ops)): self.reads |= set(R(i))
            self.writes.add("scc")
        elif mn.startswith("s_"):
            self.kind = "salu"
            self.writes |= set(R(0))
            for i in range(1, len(ops)): self.reads |= set(R(i))
            if not (mn.startswith("s_mov") or mn.startswith("s_cselect") or mn.startswith("s_mul") or mn.startswith("s_getpc")):
                self.writes.add("scc")
            if mn.startswith("s_addc") or mn.startswith("s_cselect") or mn.startswith("s_subb"):
                self.reads.add("scc")
            if "saveexec" in mn:
                self.reads.add("exec"); self.writes.add("exec")
        else:
            raise ValueError("unknown instr " + self.text)
    def states(self):
        if self.kind == "label": return 0
        if self.kind == "nop": return self.n
        return 1
    def waitcnts(self):
        vm = re.search(r"vmcnt\((\d+)\)", self.text); lg = re.search(r"lgkmcnt\((\d+)\)", self.text)
        return (int(vm.group(1)) if vm else None, int(lg.group(1)) if lg else None)

class AutoWait(I):
    def __init__(self, need=(), vm=None, lg0=False, needv=()):
        self.need = set(need); self.vm = vm; self.lg = 0 if lg0 else None; self.needv = set(needv)
        self.fixed_vm = vm
        self.attr = {}
        self.kind = "wait"; self.mn = "s_waitcnt"; self.reads = set(); self.writes = set()
        self.render()
    def render(self):
        p = []
        if self.vm is not None: p.append(f"vmcnt({self.vm})")
        if self.lg is not None: p.append(f"lgkmcnt({self.lg})")
        self.text = "s_waitcnt " + " ".join(p) if p else "s_nop 0"
    def waitcnts(self):
        return (self.vm, self.lg)

def resolve_waits(trace):
    for _ in range(1):
        lg_q = []
        vm_q = []
        for ins in trace:
            if isinstance(ins, AutoWait):
                if ins.need:
                    n = None
                    for k in range(len(lg_q) - 1, -1, -1):
                        if lg_q[k].writes & ins.need:
                            n = len(lg_q) - 1 - k; break
                    if n is not None:
                        n = min(n, 15)
                        ins.lg = n if ins.lg is None else min(ins.lg, n)
                if ins.needv:
                    n = None
                    for k in range(len(vm_q) - 1, -1, -1):
                        if vm_q[k].writes & ins.needv:
                            n = len(vm_q) - 1 - k; break
                    if n is not None:
                        n = min(n, 63)
                        ins.vm = n if ins.vm is None else min(ins.vm, n)
                ins.render()
            if ins.kind in ("ds_read", "ds_write"): lg_q.append(ins)
            if ins.kind in ("dma", "vload", "vstore"): vm_q.append(ins)

def check_trace(trace, verbose=True):
    errs = []
    n = len(trace)
    pos = []; c = 0
    for ins in trace:
        pos.append(c); c += ins.states()
    def dist(i, j):
        return pos[j] - pos[i] - trace[i].states() + (trace[i].states() - 1 if trace[i].kind == "nop" else 0)
    isv = lambda r: r[0] in "va" and r not in ("vcc",)
    for j, cns in enumerate(trace):
        if cns.kind in ("label", "nop", "wait", "barrier"): continue
        i = j - 1
        while i >= 0 and pos[j] - pos[i] <= 24:
            p = trace[i]
            d = pos[j] - pos[i] - 1
            need = 0; why = ""
            if p.kind == "mfma":
                D = set(p.D)
                big = 8 if p.passes == 4 else 12
                if cns.kind == "mfma":
                    if D & set(cns.A + cns.B): need, why = big, "mfma D -> mfma A/B"
                    if D & set(cns.C):
                        if cns.C == p.D and cns.passes == p.passes: pass
                        else: need, why = max(need, big - 2), "mfma D -> overlapping C"
                    if D & set(cns.D) and not (cns.C == p.D): need, why = max(need, big), "mfma WAW"
                elif (D & (cns.reads | cns.writes)): need, why = big, "mfma D -> " + cns.kind
                if cns.kind in ("valu", "trans") and set(p.C) & cns.writes:
                    w = 3 if p.passes == 4 else 7
                    if w > need: need, why = w, "mfma C read -> valu write"
            if p.kind in ("valu", "trans"):
                vw = {r for r in p.writes if isv(r)}
                sw = p.writes - vw
                if cns.kind == "mfma" and vw & cns.reads: need, why = max(need, 2), "valu -> mfma"
                if cns.kind in ("valu", "trans"):
                    if p.kind == "trans" and cns.kind == "valu" and vw & cns.reads: need, why = max(need, 1), "trans -> valu"
                    if p.kind == "trans" and cns.kind == "trans" and vw & cns.reads: need, why = max(need, 1), "trans -> trans(safe)"
                    if "permlane" in cns.mn and vw & cns.reads: need, why = max(need, 2), "valu -> permlane"
                    if ("readfirstlane" in cns.mn or "readlane" in cns.mn) and vw & cns.reads: need, why = max(need, 1), "valu -> readlane"
                    if sw & cns.reads: need, why = max(need, 2), "valu sgpr -> valu"
                if cns.kind in ("dma", "vload", "vstore") and sw & cns.reads: need, why = max(need, 5), "valu sgpr -> vmem"
                if cns.kind in ("salu", "branch") and sw & cns.reads: need, why = max(need, 4), "valu sgpr -> salu (safe)"
            if p.kind == "salu" and "m0" in p.writes and cns.kind == "dma": need, why = max(need, 1), "m0 -> dma"
            if p.kind == "vstore" and len(p.data) >= 3 and set(p.data) & cns.writes: need, why = max(need, 2), "store data WAR"
            if p.kind == "ds_write" and cns.kind in ("valu", "trans", "mfma") and (p.reads & cns.writes) and False: pass
            if d < need and need > 0:
                errs.append(f"HAZARD {why}: need {need} have {d}: [{i}] {p.text}  ->  [{j}] {cns.text}")
            i -= 1
    lg_q = []; vm_q = []
    for j, ins in enumerate(trace):
        if ins.kind == "wait":
            vm, lg = ins.waitcnts()
            if lg is not None:
                if any(x.kind == "smem" for x in lg_q) and lg != 0:
                    errs.append(f"counted lgkm wait with smem outstanding at [{j}]")
                while len(lg_q) > lg: lg_q.pop(0)
            if vm is not None:
                while len(vm_q) > vm: vm_q.pop(0)
            continue
        touched = ins.reads | ins.writes
        for o in lg_q:
            if o.writes & touched:
                errs.append(f"LGKM RAW/WAW: [{j}] {ins.text} touches regs of outstanding {o.text}")
        for o in vm_q:
            if o.writes & touched:
                errs.append(f"VM RAW/WAW: [{j}] {ins.text} touches regs of outstanding {o.text}")
        if ins.kind in ("ds_read", "ds_write", "smem"): lg_q.append(ins)
        if ins.kind in ("dma", "vload", "vstore"): vm_q.append(ins)
        if len(lg_q) > 15 + 16: pass
        if len(vm_q) > 63: errs.append(f"vmcnt overflow at [{j}]")
    lg_q = []; vm_q = []
    wr_state = {}
    rd_state = {}
    done_w = set(); done_r = set()
    for j, ins in enumerate(trace):
        if ins.kind == "wait":
            vm, lg = ins.waitcnts()
            if lg is not None:
                while len(lg_q) > lg:
                    x = lg_q.pop(0); done_w.add(x); done_r.add(x)
            if vm is not None:
                while len(vm_q) > vm:
                    x = vm_q.pop(0); done_w.add(x)
        elif ins.kind == "barrier":
            for s in wr_state: wr_state[s] = {x for x in wr_state[s] if x not in done_w}
            for s in rd_state: rd_state[s] = {x for x in rd_state[s] if x not in done_r}
        if "rd" in ins.attr:
            s = ins.attr["rd"]
            if wr_state.get(s): errs.append(f"LDS RAW on slot {s} at [{j}] {ins.text}: {len(wr_state[s])} writes not complete+barriered")
            rd_state.setdefault(s, set()).add(j)
        if "wr" in ins.attr:
            s = ins.attr["wr"]
            if rd_state.get(s): errs.append(f"LDS WAR on slot {s} at [{j}] {ins.text}: {len(rd_state[s])} reads not complete+barriered")
            if ins.attr.get("waw") and wr_state.get(ins.attr["waw"]): errs.append(f"LDS WAW on slot {s} at [{j}] {ins.text}")
            wr_state.setdefault(s, set()).add(j)
        if ins.kind in ("ds_read", "ds_write", "smem"): lg_q.append(j)
        if ins.kind in ("dma", "vload", "vstore"): vm_q.append(j)
    cur = None
    for j, ins in enumerate(trace):
        if "m0" in ins.writes: cur = ins.attr.get("m0tag")
        if ins.kind == "dma" and ins.attr.get("m0tag") != cur:
            errs.append(f"M0 mismatch at [{j}] {ins.text}: have {cur}")
    last = None
    for j, ins in enumerate(trace):
        if "scc" in ins.reads:
            if ins.mn.startswith("s_addc") and not (last is not None and last.mn == "s_add_u32" and "m0" not in last.writes and int(last.ops[0][1:]) + 1 == int(ins.ops[0][1:])):
                errs.append(f"SCC pairing at [{j}] {ins.text} after {last.text if last else None}")
            if (ins.kind == "branch" or ins.mn.startswith("s_cselect")) and not (last is not None and (last.mn.startswith("s_cmp") or last.mn.startswith("s_or_b64") or last.mn.startswith("s_andn2"))):
                errs.append(f"SCC pairing at [{j}] {ins.text} after {last.text if last else None}")
        if "scc" in ins.writes: last = ins
    if verbose:
        seen = set()
        for e in errs:
            k = re.sub(r"\[\d+\]", "", e)
            if k not in seen:
                seen.add(k); print(e)
        print(f"check: {len(errs)} problems in trace of {n} instrs")
    return errs
```

```python
import sys, math
from kgen import I, AutoWait, resolve_waits, check_trace

NAME = "standalone__gqa_softmax__near_ridge"
PIECE = 1056
SLOT = 16 * PIECE
PAIR = 4 * SLOT
SLOTOFF = {"K0": 0, "K1": SLOT, "V0": 2 * SLOT, "V1": 3 * SLOT}
FLAGOFF = 2 * PAIR
LDS_BYTES = FLAGOFF + 256

Qr = lambda qb, ds: 16 + (qb * 4 + ds) * 4
Sr = lambda kb, qb: 80 + (kb * 4 + qb) * 4
Pr = lambda par, qb, ks: 144 + 32 * par + (qb * 2 + ks) * 4
NEGM = lambda qb: 208 + 4 * qb
ONES = 224
SUMM = {0: 228, 1: 232}
SUMA = {2: 236, 3: 237}
VK, VV, VO0, VO1, VLANE = 238, 239, 240, 241, 242
Or = lambda db, qb: (db * 4 + qb) * 4
Kf = lambda kb, ds: 128 + (kb * 4 + ds) * 4
Vf = lambda db, ks: 192 + (db * 2 + ks) * 4
v4 = lambda r: f"v[{r}:{r+3}]"
a4 = lambda r: f"a[{r}:{r+3}]"
a2 = lambda r: f"a[{r}:{r+1}]"
areg = lambda r, n: [f"a{i}" for i in range(r, r + n)]
vreg = lambda r, n: [f"v{i}" for i in range(r, r + n)]
MF = "v_mfma_f32_16x16x32_bf16"
CSCALE = (128 ** -0.5) * math.log2(math.e)
import struct
f2u = lambda x: struct.unpack("<I", struct.pack("<f", x))[0]
THR = 2.0 ** 30

def m0_set(slot, j):
    return I(f"s_add_u32 m0, s24, {SLOTOFF[slot] + j * PIECE - 1024 * (j & 3)}", m0tag=(slot, j))
def dma(slot, j, opt=""):
    base = "s[16:17]" if slot[0] == "K" else "s[18:19]"
    return I(f"global_load_lds_dwordx4 v{VO0 + (j >> 2)}, {base} offset:{1024 * (j & 3)}{opt}", wr=slot, m0tag=(slot, j))
def kread(slot, kb, ds, dst=None):
    d = Kf(kb, ds) if dst is None else dst
    return I(f"ds_read_b128 {a4(d)}, v{VK} offset:{SLOTOFF[slot] + kb * 256 + ds * 64}", rd=slot)
def vread(slot, db, ks, hf):
    return I(f"ds_read_b64_tr_b16 {a2(Vf(db, ks) + 2 * hf)}, v{VV} offset:{SLOTOFF[slot] + (2 * ks + hf) * 256 + db * 32}", rd=slot)
def qk(kb, qb, ds, kreg=None, czero=False):
    k = Kf(kb, ds) if kreg is None else kreg
    c = v4(Sr(kb, qb)) if ds else ("0" if czero else v4(NEGM(qb)))
    return I(f"{MF} {v4(Sr(kb, qb))}, {a4(k)}, {v4(Qr(qb, ds))}, {c}")
def pv(par, db, qb, ks):
    return I(f"{MF} {a4(Or(db, qb))}, {a4(Vf(db, ks))}, {v4(Pr(par, qb, ks))}, {a4(Or(db, qb))}")
def summ(par, qb, ks):
    return I(f"{MF} {v4(SUMM[qb])}, {v4(ONES)}, {v4(Pr(par, qb, ks))}, {v4(SUMM[qb])}")
def exp_i(n):
    b, r = n >> 2, n & 3
    x = Sr(b >> 2, b & 3) + r
    return I(f"v_exp_f32 v{x}, v{x}")
def items_after_exp(n):
    b, r = n >> 2, n & 3
    kb, qb = b >> 2, b & 3
    out = []
    if qb in SUMA: out.append(("add", kb, qb, r))
    if r & 1: out.append(("cvt", kb, qb, r >> 1))
    return out
def valu_item(it, par):
    k, kb, qb, r = it
    s = Sr(kb, qb)
    if k == "add":
        return I(f"v_add_f32 v{SUMA[qb]}, v{SUMA[qb]}, v{s + r}")
    d = Pr(par, qb, kb >> 1) + 2 * (kb & 1) + r
    return I(f"v_cvt_pk_bf16_f32 v{d}, v{s + 2 * r}, v{s + 2 * r + 1}")

def mfma_seq(par, with_qk=True):
    seq = []
    if with_qk:
        for kb in range(4):
            for qb in range(4):
                for ds in range(4):
                    seq.append(qk(kb, qb, ds))
    for qb in SUMM:
        for ks in range(2):
            seq.append(summ(par, qb, ks))
    for db in range(8):
        for qb in range(4):
            for ks in range(2):
                seq.append(pv(par, db, qb, ks))
    return seq

NG = 132
GA, GB, GEXIT = 18, 100, 98
def gap_plan():
    ty = [None] * NG
    for g in range(0, 9): ty[g] = "mem"
    for g in range(9, GA): ty[g] = "exp"
    ty[GA] = "bar"
    for i in range(16): ty[GA + 1 + i] = "mem" if i % 2 else "exp"
    lo, hi, nm = GA + 17, 92, 32
    n = hi - lo + 1
    for i in range(n):
        ty[lo + i] = "mem" if ((i + 1) * nm) // n > (i * nm) // n else "exp"
    for g in range(93, GB): ty[g] = "exp"
    ty[95] = "spare"
    ty[GB] = "bar"
    for g in range(GB + 1, NG): ty[g] = "exp" if (g - GB) % 2 == 1 else "mem"
    ty[NG - 1] = "spare"
    return ty

def build(opts):
    stamps = opts.get("stamps", False)
    ty = gap_plan()
    assert ty.count("exp") == 64, ty.count("exp")
    assert ty.count("mem") == 64, ty.count("mem")
    memg = [g for g in range(NG) if ty[g] == "mem"]
    pre = [g for g in memg if g < GA]; mid = [g for g in memg if GA < g < GB]; post = [g for g in memg if g > GB]
    assert len(mid) == 40 and len(pre) + len(post) == 24
    kreads = [(kb, ds) for kb in range(4) for ds in range(4)]
    vreads = [(db, ks, hf) for db in range(8) for ks in range(2) for hf in range(2)]
    n_post_k = len(post) - 8
    def valu_sim():
        q = []
        assign = None
        for rnd in range(6):
            q = [(it, 1) for it, _ in q]
            carry_in = [it for it, _ in q]
            assign = {}
            n = 0
            for g in range(NG):
                slots = {"mem": 1, "spare": 2 if g != NG - 1 else 0}.get(ty[g], 0)
                lst = []
                for _ in range(slots):
                    if q: lst.append(q.pop(0))
                assign[g] = lst
                if ty[g] == "exp":
                    q += [(it, 0) for it in items_after_exp(n)]
                    n += 1
            carry_out = [it for it, _ in q]
        assert carry_in == carry_out, (carry_in, carry_out)
        return assign, carry_in
    vassign, carry = valu_sim()
    if opts.get("verbose"): print("carry", carry)

    def body(par):
        ms = mfma_seq(par)
        kslot_cur = f"K{1 - par}"
        kslot_nxt = f"K{par}"
        vslot = f"V{par}"
        mem = {}; shadow = {}
        for i, g in enumerate(pre): mem[g] = kread(kslot_cur, *kreads[n_post_k + i])
        for i, g in enumerate(mid):
            if i < 8:
                mem[g] = dma(kslot_cur, i); shadow[g - 1] = m0_set(kslot_cur, i)
            else:
                mem[g] = vread(vslot, *vreads[i - 8])
        for i, g in enumerate(post):
            if i < 8:
                mem[g] = dma(vslot, i); shadow[g - 1] = m0_set(vslot, i)
            else:
                mem[g] = kread(kslot_nxt, *kreads[i - 8])
        def put(g, ins):
            assert g not in shadow and ty[g] != "bar", g
            shadow[g] = ins
        put(15, AutoWait(need=areg(Kf(1, 0), 16)))
        put(GA - 1, AutoWait(vm=16, lg0=True))
        g0 = mid[7] + 1
        put(g0, I("s_cmp_lt_u32 s25, 12")); put(g0 + 1, I("s_cselect_b32 s26, 0x4000, 0"))
        put(g0 + 2, I("s_add_u32 s16, s16, s26")); put(g0 + 3, I("s_addc_u32 s17, s17, 0"))
        put(g0 + 4, I("s_add_u32 s25, s25, 1"))
        for db in range(4): put(67 + 8 * db, AutoWait(need=areg(Vf(db, 0), 8)))
        if par == 0:
            put(GEXIT - 1, I("s_cmp_eq_u32 s25, 15")); put(GEXIT, I("s_cbranch_scc1 L_tail"))
        put(GB - 1, AutoWait(vm=16, lg0=True))
        g1 = post[7] + 1
        put(g1, I("s_add_u32 s18, s18, 0x4000")); put(g1 + 1, I("s_addc_u32 s19, s19, 0"))
        put(NG - 2, AutoWait(need=areg(Kf(0, 0), 16)))
        if par == 1: put(NG - 1, I("s_branch L_loop"))
        gaps = []; n = 0
        for g in range(NG):
            gap = [ms[g]]
            if g in shadow: gap.append(shadow[g])
            if ty[g] == "bar": gap.append(I("s_barrier"))
            if g in mem: gap.append(mem[g])
            if ty[g] == "exp":
                gap.append(exp_i(n)); n += 1
            for it, age in vassign[g]:
                gap.append(valu_item(it, par if age else 1 - par))
            gaps.append(gap)
        return gaps

    even = body(0); odd = body(1)
    flat = lambda gs: [x for g in gs for x in g]
    evenA = flat(even[:GEXIT]) + even[GEXIT][:2]
    evenB = even[GEXIT][2:] + flat(even[GEXIT + 1:])
    oddL = flat(odd)

    nexp_done = sum(1 for g in range(GEXIT) if ty[g] == "exp")
    done_items = [it for g in range(GEXIT) for it, age in vassign[g] if age == 0]
    q = [it for n in range(nexp_done) for it in items_after_exp(n) if it not in done_items]
    ms = mfma_seq(0)[GEXIT + 1:] + mfma_seq(1, with_qk=False)
    tail = []
    n = nexp_done
    vr = list(vreads)
    for k in range(len(ms) + 1):
        G = GEXIT + k
        if k > 0:
            if G >= 132:
                pend = set()
                for it in q + [x for m in range(n, 64) for x in items_after_exp(m)]:
                    if it[0] == "cvt": pend |= valu_item(it, 1).writes
                assert not (pend & ms[k - 1].reads), (G, ms[k - 1].text)
            tail.append(ms[k - 1])
        if G == GEXIT + 1: tail.append(AutoWait(vm=0, lg0=True))
        if G == GEXIT + 2:
            tail.append(I("s_barrier")); continue
        if G >= 135 and (G - 135) % 8 == 0 and (G - 135) // 8 < 8:
            tail.append(AutoWait(need=areg(Vf((G - 135) // 8, 0), 8)))
        if n < 64:
            tail.append(exp_i(n)); newq = items_after_exp(n); n += 1
            q += newq
            continue
        slots = 2
        if vr and G > GEXIT + 2 and G >= 68 + 8 * vr[0][0] + 7:
            tail.append(vread("V1", *vr.pop(0))); slots = 1
        for _ in range(slots):
            if q: tail.append(valu_item(q.pop(0), 1))
    assert not vr and not q

    P = []
    A = lambda t, **k: P.append(I(t, **k))
    def stamp(L, i):
        if stamps:
            L.append(I(f"s_memtime s[{60 + 2 * i}:{61 + 2 * i}]")); L.append(I("s_waitcnt lgkmcnt(0)"))
    head = []
    H = lambda t, **k: head.append(I(t, **k))
    H("s_cmp_ge_u32 s2, 0x100"); H("s_cbranch_scc1 L_end")
    if stamps:
        H("s_memrealtime s[56:57]")
        H("s_memtime s[60:61]")
    H("s_load_dwordx4 s[4:7], s[0:1], 0"); H("s_load_dwordx4 s[8:11], s[0:1], 16")
    if stamps: H("s_load_dwordx2 s[54:55], s[0:1], 40")
    H("v_lshrrev_b32 v1, 6, v0"); H(f"v_and_b32 v{VLANE}, 63, v0")
    H("v_readfirstlane_b32 s12, v1")
    H("s_and_b32 s31, s2, 7"); H("s_lshl_b32 s31, s31, 3"); H("s_lshr_b32 s32, s2, 5"); H("s_add_u32 s31, s31, s32")
    H("s_lshr_b32 s32, s2, 3"); H("s_and_b32 s32, s32, 3"); H("s_lshl_b32 s33, s31, 2"); H("s_add_u32 s33, s33, s32")
    H("s_and_b32 s13, s12, 1"); H("s_lshr_b32 s14, s12, 1")
    H("s_lshl_b32 s34, s31, 19"); H("s_lshl_b32 s35, s14, 18"); H("s_add_u32 s34, s34, s35")
    H("s_lshl_b32 s35, s13, 13"); H("s_add_u32 s34, s34, s35")
    H("s_lshl_b32 s36, s33, 15"); H("s_lshl_b32 s35, s13, 14"); H("s_add_u32 s36, s36, s35")
    H(f"s_mul_i32 s37, s14, {PAIR}"); H(f"s_mul_i32 s24, s13, {8 * PIECE}"); H("s_add_u32 s24, s24, s37")
    H(f"v_lshlrev_b32 v{VO0}, 4, v{VLANE}"); H(f"v_add_u32 v{VO1}, 0x1000, v{VO0}")
    H("s_mov_b32 s27, 0")
    H("s_waitcnt lgkmcnt(0)")
    H("s_add_u32 s20, s6, s34"); H("s_addc_u32 s21, s7, 0")
    H("s_add_u32 s22, s8, s34"); H("s_addc_u32 s23, s9, 0")
    H("s_add_u32 s4, s4, s36"); H("s_addc_u32 s5, s5, 0")
    H("s_add_u32 s10, s10, s36"); H("s_addc_u32 s11, s11, 0")
    stamp(head, 1)

    A("L_restart:")
    A("s_mov_b64 s[16:17], s[20:21]"); A("s_mov_b64 s[18:19], s[22:23]")
    def dma_tile(L, slot):
        for j in range(8):
            L.append(m0_set(slot, j)); L.append(I("s_nop 0")); L.append(dma(slot, j))
        b = 16 if slot[0] == "K" else 18
        L.append(I(f"s_add_u32 s{b}, s{b}, 0x4000")); L.append(I(f"s_addc_u32 s{b+1}, s{b+1}, 0"))
    dma_tile(P, "K0")
    A(f"v_and_b32 v1, 15, v{VLANE}"); A("v_lshlrev_b32 v1, 8, v1")
    A(f"v_lshrrev_b32 v2, 4, v{VLANE}"); A("v_lshl_add_u32 v1, v2, 4, v1")
    A("s_lshl_b32 s31, s14, 13")
    A("s_xor_b32 s32, s31, 0x2000")
    A("v_add_u32 v4, s31, v1"); A("v_add_u32 v5, 0x1000, v4"); A("v_add_u32 v6, s32, v1"); A("v_add_u32 v7, 0x1000, v6")
    for qb in range(4):
        for ds in range(4):
            A(f"global_load_dwordx4 {v4(Qr(qb, ds))}, v{4 + qb}, s[4:5] offset:{ds * 64}")
    dma_tile(P, "K1"); dma_tile(P, "V0")
    A(f"v_and_b32 v1, 15, v{VLANE}"); A(f"v_mul_u32_u24 v1, {PIECE}, v1"); A(f"v_lshrrev_b32 v2, 4, v{VLANE}")
    A("v_lshl_add_u32 v1, v2, 4, v1"); A(f"v_add_u32 v{VK}, s37, v1")
    A(f"v_lshrrev_b32 v1, 2, v{VLANE}"); A(f"v_mul_u32_u24 v1, {PIECE}, v1"); A(f"v_and_b32 v2, 3, v{VLANE}")
    A("v_lshl_add_u32 v1, v2, 3, v1"); A(f"v_add_u32 v{VV}, s37, v1")
    for r in range(128): A(f"v_accvgpr_write_b32 a{r}, 0")
    for r in range(4): A(f"v_mov_b32 v{ONES + r}, 0x3f803f80")
    for r in range(228, 238): A(f"v_mov_b32 v{r}, 0")
    A(f"s_mov_b32 s28, {f2u(CSCALE):#x}"); A("s_mov_b32 s29, s28"); A("s_mov_b32 s25, 0")
    A("s_waitcnt vmcnt(32)"); A("s_barrier")
    stamp(P, 2)
    K0f = lambda kb, ds: 192 + (kb * 4 + ds) * 4
    for kb, ds in kreads: P.append(kread("K0", kb, ds, dst=K0f(kb, ds)))
    A("s_waitcnt lgkmcnt(0)"); A("s_barrier")
    dma_tile(P, "K0"); dma_tile(P, "V1")
    segs = []
    skipsegs = []
    for qb in range(4):
        P.append(AutoWait(needv=vreg(Qr(qb, 0), 16)))
        if qb == 0: stamp(P, 3)
        if qb == 3: stamp(P, 4)
        for i in range(16):
            x = Qr(qb, 0) + i; t = 2 * (i % 4)
            A(f"v_lshlrev_b32 v{t}, 16, v{x}"); A(f"v_and_b32 v{t+1}, 0xffff0000, v{x}")
            A(f"v_pk_mul_f32 v[{t}:{t+1}], v[{t}:{t+1}], s[28:29]")
            A(f"v_cvt_pk_bf16_f32 v{x}, v{t}, v{t+1}")
        A("s_nop 1")
        for kb in range(4):
            for ds in range(4):
                P.append(qk(kb, qb, ds, kreg=K0f(kb, ds), czero=True))
        if qb == 3:
            A("s_waitcnt vmcnt(24)"); A("s_barrier")
            for i in range(n_post_k): P.append(kread("K1", *kreads[i]))
            A("s_nop 0")
        else:
            A("s_nop 6")
        A("s_cmp_lg_u32 s27, 0"); A(f"s_cbranch_scc1 L_skipmax{qb}")
        start = len(P)
        s = [Sr(kb, qb) + r for kb in range(4) for r in range(4)]
        A(f"v_max3_f32 v8, v{s[0]}, v{s[1]}, v{s[2]}"); A(f"v_max3_f32 v9, v{s[3]}, v{s[4]}, v{s[5]}")
        A(f"v_max3_f32 v8, v8, v{s[6]}, v{s[7]}"); A(f"v_max3_f32 v9, v9, v{s[8]}, v{s[9]}")
        A(f"v_max3_f32 v8, v8, v{s[10]}, v{s[11]}"); A(f"v_max3_f32 v9, v9, v{s[12]}, v{s[13]}")
        A(f"v_max3_f32 v8, v8, v{s[14]}, v{s[15]}"); A("v_max_f32 v8, v8, v9")
        xl_reduce(P, "v_max_f32", 8, 9)
        for r in range(4): A(f"v_sub_f32 v{NEGM(qb) + r}, 0, v8")
        skipsegs.append((start, len(P)))
        A(f"L_skipmax{qb}:")
        for x in s: A(f"v_add_f32 v{x}, v{NEGM(qb)}, v{x}")
        for kb in range(4):
            for r in range(4): P.append(exp_i((kb * 4 + qb) * 4 + r))
        A("s_nop 0")
        for kb in range(4):
            for r in range(4):
                for it in items_after_exp((kb * 4 + qb) * 4 + r):
                    if it not in carry: P.append(valu_item(it, 0))
    P.append(AutoWait(need=areg(Kf(0, 0), 16)))
    stamp(P, 5)

    E = []
    B = lambda t, **k: E.append(I(t, **k))
    stamp(E, 6)
    for qb in SUMA:
        xl_reduce(E, "v_add_f32", SUMA[qb], 8)
    B(f"s_mul_i32 s31, s13, {SLOT}"); B("s_add_u32 s32, s31, s37")
    B(f"s_xor_b32 s33, s14, 1"); B(f"s_mul_i32 s33, s33, {PAIR}"); B("s_add_u32 s33, s33, s31")
    B(f"v_add_u32 v10, s32, v{VO0}"); B(f"v_add_u32 v11, s33, v{VO0}")
    B(f"v_and_b32 v12, 0xf0, v{VO0}"); B("v_add_u32 v13, s33, v12"); B("v_add_u32 v12, s32, v12")
    B(f"s_mov_b32 s30, {f2u(THR):#x}")
    B(f"v_cmp_nge_f32 s[38:39], s30, v{SUMM[0]}"); B(f"v_cmp_nge_f32 s[40:41], s30, v{SUMM[1]}")
    B(f"v_cmp_nge_f32 s[42:43], s30, v{SUMA[2]}"); B(f"v_cmp_nge_f32 s[44:45], s30, v{SUMA[3]}")
    B(f"v_mov_b32 v4, v{NEGM(2)}"); B(f"v_mov_b32 v5, v{NEGM(3)}"); B(f"v_mov_b32 v6, v{SUMA[2]}"); B(f"v_mov_b32 v7, v{SUMA[3]}")
    B("s_or_b64 s[38:39], s[38:39], s[40:41]"); B("s_or_b64 s[42:43], s[42:43], s[44:45]"); B("s_or_b64 s[38:39], s[38:39], s[42:43]")
    B("s_cselect_b32 s31, 1, 0"); B("s_lshl_b32 s38, s12, 2"); B(f"s_add_u32 s38, s38, {FLAGOFF}")
    B("v_mov_b32 v14, s38"); B("v_mov_b32 v15, s31")
    B("ds_write_b32 v14, v15", wr="F")
    B("ds_write_b128 v12, v[4:7] offset:16384", wr="X", waw="K0")
    i = 0
    for db in range(8):
        for qb in (2, 3):
            B(f"ds_write_b128 v10, {a4(Or(db, qb))} offset:{1024 * i}", wr="X", waw="K0"); i += 1
    OWN = lambda db, qb: 80 + (db * 2 + qb) * 4
    OTH = lambda db, qb: 144 + (db * 2 + qb) * 4
    for db in range(8):
        for qb in (0, 1):
            for r in range(4): B(f"v_accvgpr_read_b32 v{OWN(db, qb) + r}, a{Or(db, qb) + r}")
    B(f"v_mov_b32 v14, {FLAGOFF}")
    B("s_waitcnt lgkmcnt(0)"); B("s_barrier")
    B("ds_read_b128 v[0:3], v14", rd="F")
    B("ds_read_b128 v[4:7], v13 offset:16384", rd="X")
    i = 0
    for db in range(8):
        for qb in (0, 1):
            B(f"ds_read_b128 {v4(OTH(db, qb))}, v11 offset:{1024 * i}", rd="X"); i += 1
    E.append(AutoWait(need=vreg(0, 8)))
    B("v_or_b32 v0, v0, v1"); B("v_or3_b32 v0, v0, v2, v3"); B("s_nop 0")
    B("v_readfirstlane_b32 s31, v0"); B("s_nop 3")
    B("s_andn2_b32 s31, s31, s27"); B("s_cbranch_scc1 L_fallback")
    E2 = []
    B = lambda t, **k: E2.append(I(t, **k))
    for qb in (0, 1):
        nm, lo, no, lt = NEGM(qb), SUMM[qb], 4 + qb, 6 + qb
        wo, wt = 244 + 4 * qb, 246 + 4 * qb
        B(f"v_min_f32 v8, v{nm}, v{no}")
        B(f"v_sub_f32 v9, v8, v{nm}"); B(f"v_sub_f32 v8, v8, v{no}")
        B("v_exp_f32 v9, v9"); B("v_exp_f32 v8, v8"); B("s_nop 0")
        B(f"v_mul_f32 v15, v9, v{lo}"); B(f"v_fma_f32 v15, v8, v{lt}, v15")
        B("v_rcp_f32 v15, v15"); B("s_nop 0")
        B(f"v_mul_f32 v{wo}, v9, v15"); B(f"v_mul_f32 v{wt}, v8, v15")
    B(f"v_and_b32 v1, 15, v{VLANE}"); B("v_lshlrev_b32 v1, 8, v1")
    B(f"v_bfe_u32 v2, v{VLANE}, 4, 1"); B("v_lshl_add_u32 v1, v2, 5, v1")
    B(f"v_lshrrev_b32 v2, 5, v{VLANE}"); B("v_lshl_add_u32 v1, v2, 4, v1")
    B("s_lshl_b32 s31, s14, 13"); B("v_add_u32 v2, s31, v1"); B("v_add_u32 v3, 0x1000, v2")
    for j in range(4):
        for qb in (0, 1):
            wo, wt = 244 + 4 * qb, 246 + 4 * qb
            E2.append(AutoWait(need=vreg(OTH(2 * j + 1, qb), 4)))
            o = 16 + 4 * ((2 * j + qb) % 8)
            for half, db in enumerate((2 * j, 2 * j + 1)):
                for pr in range(2):
                    x = OWN(db, qb) + 2 * pr; y = OTH(db, qb) + 2 * pr
                    B(f"v_pk_mul_f32 v[{x}:{x+1}], v[{x}:{x+1}], v[{wo}:{wo+1}] op_sel_hi:[1,0]")
                    B(f"v_pk_fma_f32 v[{x}:{x+1}], v[{y}:{y+1}], v[{wt}:{wt+1}], v[{x}:{x+1}] op_sel_hi:[1,0,1]")
                    B(f"v_cvt_pk_bf16_f32 v{o + 2 * half + pr}, v{x}, v{x+1}")
            B("s_nop 1")
            B(f"v_permlane16_swap_b32 v{o}, v{o+2}"); B(f"v_permlane16_swap_b32 v{o+1}, v{o+3}")
            B(f"global_store_dwordx4 v{2 + qb}, {v4(o)}, s[10:11] offset:{64 * j}")
    if stamps:
        stamp(E2, 7)
        B("s_waitcnt vmcnt(0)")
        stamp(E2, 8)
        B("s_memrealtime s[58:59]"); B("s_waitcnt lgkmcnt(0)")
        B("s_lshl_b32 s31, s2, 2"); B("s_add_u32 s31, s31, s12"); B("s_lshl_b32 s31, s31, 7")
        B("v_mov_b32 v1, s31")
        for k in range(0, 24, 4):
            for r in range(4): B(f"v_mov_b32 v{4 + r}, s{56 + k + r}")
            B(f"global_store_dwordx4 v1, v[4:7], s[54:55] offset:{k * 4}")
            B("s_nop 1")
    B("L_end:"); B("s_endpgm")

    F = []
    C = lambda t, **k: F.append(I(t, **k))
    C("L_fallback:")
    C("s_mov_b32 s27, 1"); C("s_mov_b64 s[16:17], s[20:21]"); C("s_mov_b32 s25, 0")
    for qb in range(4): C(f"v_mov_b32 v{244 + qb}, 0xff800000")
    C("s_waitcnt lgkmcnt(0)")
    FL = []
    C = lambda t, **k: FL.append(I(t, **k))
    C("L_fbloop:"); C("s_barrier")
    dma_tile(FL, "K0")
    C("s_waitcnt vmcnt(0)"); C("s_barrier")
    for kb, ds in kreads: FL.append(kread("K0", kb, ds))
    C("s_waitcnt lgkmcnt(0)")
    for kb in range(4):
        for qb in range(4):
            for ds in range(4): FL.append(qk(kb, qb, ds, czero=True))
    C("s_nop 7")
    for kb in range(4):
        for qb in range(4):
            s = Sr(kb, qb)
            C(f"v_max3_f32 v{244 + qb}, v{244 + qb}, v{s}, v{s+1}"); C(f"v_max3_f32 v{244 + qb}, v{244 + qb}, v{s+2}, v{s+3}")
    C("s_add_u32 s25, s25, 1"); C("s_cmp_lt_u32 s25, 16"); C("s_cbranch_scc1 L_fbloop")
    F2 = []
    for qb in range(4):
        xl_reduce(F2, "v_max_f32", 244 + qb, 8)
        for r in range(4): F2.append(I(f"v_sub_f32 v{NEGM(qb) + r}, 0, v{244 + qb}"))
    F2.append(I("s_barrier")); F2.append(I("s_branch L_restart"))

    LL = [I(".p2align 6"), I("L_loop:")]
    LT = [I("L_tail:")]
    main = []
    for r in range(7): main += evenA + evenB + oddL
    main += evenA + tail + E
    Pskip = [x for i, x in enumerate(P) if not any(a <= i < b for a, b in skipsegs)]
    trace1 = head + P + main + E2
    trace2 = head + P + main + F + FL + FL + F2 + Pskip + main + E2
    resolve_waits(trace1); resolve_waits(trace2)
    e1 = check_trace(trace1); e2 = check_trace(trace2)
    prog = head + P + LL + evenA + evenB + oddL + LT + tail + E + E2 + F + FL + F2
    return prog, e1 + e2

def xl_reduce(L, op, r, t):
    for sw in ("v_permlane32_swap_b32", "v_permlane16_swap_b32"):
        L.append(I(f"v_mov_b32 v{t}, v{r}")); L.append(I("s_nop 1"))
        L.append(I(f"{sw} v{r}, v{t}")); L.append(I(f"{op} v{r}, v{r}, v{t}"))

def emit(prog, path, kname):
    hdr = open("cdna_kernels/" + NAME + ".s.ref").read().split("; Override launch")[0]
    out = [hdr.rstrip("\n")]
    out.append(f"; @launch grid=(256,1,1) block=(256,1,1) lds={LDS_BYTES}")
    out.append('.amdgcn_target "amdgcn-amd-amdhsa--gfx950"')
    out.append(f".text\n.globl {kname}\n.p2align 8\n.type {kname},@function\n{kname}:")
    for ins in prog:
        out.append(ins.text if ins.kind == "label" else "    " + ins.text)
    out.append('.section .rodata,"a"\n.p2align 6')
    out.append(f".amdhsa_kernel {kname}")
    out.append("  .amdhsa_next_free_vgpr 512\n  .amdhsa_next_free_sgpr 102\n  .amdhsa_accum_offset 256\n  .amdhsa_group_segment_fixed_size 0\n  .amdhsa_kernarg_size 48\n  .amdhsa_user_sgpr_count 2\n  .amdhsa_user_sgpr_kernarg_segment_ptr 1\n  .amdhsa_system_sgpr_workgroup_id_x 1\n.end_amdhsa_kernel")
    open(path, "w").write("\n".join(out) + "\n")

if __name__ == "__main__":
    prog, errs = build({"verbose": True})
    emit(prog, "cdna_kernels/" + NAME + ".s", NAME + "_kernel")
    prog, errs2 = build({"stamps": True})
    emit(prog, "attn_stamps.s", NAME + "_kernel")
    print("errors", len(errs), len(errs2))
```

```python
import re

TRANS = ("v_exp_f32", "v_rcp_f32", "v_log_f32", "v_rsq_f32", "v_sqrt_f32")

def regs_of(op):
    op = op.strip()
    op = op.lstrip("-")
    if op.startswith("|") and op.endswith("|"):
        op = op[1:-1]
    m = re.fullmatch(r"([vas])\[(\d+):(\d+)\]", op)
    if m:
        return [f"{m.group(1)}{i}" for i in range(int(m.group(2)), int(m.group(3)) + 1)]
    m = re.fullmatch(r"([vas])(\d+)", op)
    if m:
        return [op]
    if op in ("vcc", "exec"):
        return [op]
    if op == "m0":
        return ["m0"]
    return []

class I:
    def __init__(self, text, **attr):
        self.text = text
        self.attr = attr
        self.parse()
    def parse(self):
        t = self.text.split(";")[0].strip()
        self.reads = set(); self.writes = set(); self.kind = None
        if t.endswith(":") or t.startswith("."):
            self.kind = "label"; self.mn = ""; return
        parts = t.split(None, 1)
        mn = parts[0]; self.mn = mn
        rest = parts[1] if len(parts) > 1 else ""
        ops = []; depth = 0; cur = ""
        for ch in rest:
            if ch == "[": depth += 1
            if ch == "]": depth -= 1
            if ch == "," and depth == 0:
                ops.append(cur.strip()); cur = ""
            else:
                cur += ch
        if cur.strip(): ops.append(cur.strip())
        if ops:
            last = ops[-1].split()
            ops[-1] = last[0] if last else ""
        self.ops = ops
        R = lambda i: regs_of(ops[i]) if i < len(ops) else []
        if mn.startswith("v_mfma"):
            self.kind = "mfma"
            self.D = R(0); self.A = R(1); self.B = R(2); self.C = R(3)
            self.writes |= set(self.D); self.reads |= set(self.A + self.B + self.C)
            self.passes = 4 if "16x16x32" in mn else 8
        elif mn.startswith("v_"):
            self.kind = "trans" if mn.replace("_e32", "").replace("_e64", "") in TRANS else "valu"
            self.writes |= set(R(0))
            for i in range(1, len(ops)): self.reads |= set(R(i))
            if "permlane" in mn and "swap" in mn:
                self.reads |= set(R(0)); self.writes |= set(R(1))
            if mn.startswith("v_fmac") or mn.startswith("v_dot2c") or mn.startswith("v_pk_fmac"):
                self.reads |= set(R(0))
            if mn.startswith("v_cndmask") and len(ops) == 3:
                self.reads.add("vcc")
        elif mn.startswith("ds_read"):
            self.kind = "ds_read"; self.writes |= set(R(0)); self.reads |= set(R(1))
        elif mn.startswith("ds_write"):
            self.kind = "ds_write"
            for i in range(len(ops)): self.reads |= set(R(i))
        elif mn.startswith("global_load_lds"):
            self.kind = "dma"; self.reads |= set(R(0) + R(1)); self.reads.add("m0")
        elif mn.startswith("global_load") :
            self.kind = "vload"; self.writes |= set(R(0)); self.reads |= set(R(1) + R(2))
        elif mn.startswith("global_store"):
            self.kind = "vstore"; self.reads |= set(R(0) + R(1) + R(2)); self.data = R(1)
        elif mn.startswith("buffer_store"):
            self.kind = "vstore"; self.reads |= set(R(0) + R(1) + R(2) + R(3)); self.data = R(0)
        elif mn.startswith("s_load") or mn in ("s_memtime", "s_memrealtime"):
            self.kind = "smem"; self.writes |= set(R(0)); self.reads |= set(R(1))
        elif mn == "s_waitcnt":
            self.kind = "wait"
        elif mn == "s_barrier":
            self.kind = "barrier"
        elif mn == "s_nop":
            self.kind = "nop"; self.n = int(ops[0]) + 1
        elif mn.startswith("s_cbranch") or mn == "s_branch":
            self.kind = "branch"
            if "scc" in mn: self.reads.add("scc")
            if "vcc" in mn: self.reads.add("vcc")
            if "exec" in mn: self.reads.add("exec")
        elif mn in ("s_endpgm", "s_setprio", "s_sleep"):
            self.kind = "misc"
        elif mn.startswith("s_cmp"):
            self.kind = "salu"
            for i in range(len(ops)): self.reads |= set(R(i))
            self.writes.add("scc")
        elif mn.startswith("s_"):
            self.kind = "salu"
            self.writes |= set(R(0))
            for i in range(1, len(ops)): self.reads |= set(R(i))
            if not (mn.startswith("s_mov") or mn.startswith("s_cselect") or mn.startswith("s_mul") or mn.startswith("s_getpc")):
                self.writes.add("scc")
            if mn.startswith("s_addc") or mn.startswith("s_cselect") or mn.startswith("s_subb"):
                self.reads.add("scc")
            if "saveexec" in mn:
                self.reads.add("exec"); self.writes.add("exec")
        else:
            raise ValueError("unknown instr " + self.text)
    def states(self):
        if self.kind == "label": return 0
        if self.kind == "nop": return self.n
        return 1
    def waitcnts(self):
        vm = re.search(r"vmcnt\((\d+)\)", self.text); lg = re.search(r"lgkmcnt\((\d+)\)", self.text)
        return (int(vm.group(1)) if vm else None, int(lg.group(1)) if lg else None)

class AutoWait(I):
    def __init__(self, need=(), vm=None, lg0=False, needv=(), slot=None):
        self.need = set(need); self.vm = vm; self.lg = 0 if lg0 else None; self.needv = set(needv)
        self.fixed_vm = vm; self.slot = slot
        self.attr = {}
        self.kind = "wait"; self.mn = "s_waitcnt"; self.reads = set(); self.writes = set()
        self.render()
    def render(self):
        p = []
        if self.vm is not None: p.append(f"vmcnt({self.vm})")
        if self.lg is not None: p.append(f"lgkmcnt({self.lg})")
        self.text = "s_waitcnt " + " ".join(p) if p else "s_nop 0"
    def waitcnts(self):
        return (self.vm, self.lg)

def resolve_waits(trace):
    for _ in range(1):
        lg_q = []
        vm_q = []
        for ins in trace:
            if isinstance(ins, AutoWait):
                if ins.need:
                    n = None
                    for k in range(len(lg_q) - 1, -1, -1):
                        if lg_q[k].writes & ins.need:
                            n = len(lg_q) - 1 - k; break
                    if n is not None:
                        n = min(n, 15)
                        ins.lg = n if ins.lg is None else min(ins.lg, n)
                if ins.needv:
                    n = None
                    for k in range(len(vm_q) - 1, -1, -1):
                        if vm_q[k].writes & ins.needv:
                            n = len(vm_q) - 1 - k; break
                    if n is not None:
                        n = min(n, 63)
                        ins.vm = n if ins.vm is None else min(ins.vm, n)
                if ins.slot:
                    n = None
                    for k in range(len(vm_q) - 1, -1, -1):
                        if vm_q[k].attr.get("wr") == ins.slot:
                            n = len(vm_q) - 1 - k; break
                    if n is not None:
                        n = min(n, 63)
                        ins.vm = n if ins.vm is None else min(ins.vm, n)
                ins.render()
            if ins.kind in ("ds_read", "ds_write"): lg_q.append(ins)
            if ins.kind in ("dma", "vload", "vstore"): vm_q.append(ins)

def check_trace(trace, verbose=True):
    errs = []
    n = len(trace)
    pos = []; c = 0
    for ins in trace:
        pos.append(c); c += ins.states()
    def dist(i, j):
        return pos[j] - pos[i] - trace[i].states() + (trace[i].states() - 1 if trace[i].kind == "nop" else 0)
    isv = lambda r: r[0] in "va" and r not in ("vcc",)
    for j, cns in enumerate(trace):
        if cns.kind in ("label", "nop", "wait", "barrier"): continue
        i = j - 1
        while i >= 0 and pos[j] - pos[i] <= 24:
            p = trace[i]
            d = pos[j] - pos[i] - 1
            need = 0; why = ""
            if p.kind == "mfma":
                D = set(p.D)
                big = 8 if p.passes == 4 else 12
                if cns.kind == "mfma":
                    if D & set(cns.A + cns.B): need, why = big, "mfma D -> mfma A/B"
                    if D & set(cns.C):
                        if cns.C == p.D and cns.passes == p.passes: pass
                        else: need, why = max(need, big - 2), "mfma D -> overlapping C"
                    if D & set(cns.D) and not (cns.C == p.D): need, why = max(need, big), "mfma WAW"
                elif (D & (cns.reads | cns.writes)): need, why = big, "mfma D -> " + cns.kind
                if cns.kind in ("valu", "trans") and set(p.C) & cns.writes:
                    w = 3 if p.passes == 4 else 7
                    if w > need: need, why = w, "mfma C read -> valu write"
            if p.kind in ("valu", "trans"):
                vw = {r for r in p.writes if isv(r)}
                sw = p.writes - vw
                if cns.kind == "mfma" and vw & cns.reads: need, why = max(need, 2), "valu -> mfma"
                if cns.kind in ("valu", "trans"):
                    if p.kind == "trans" and cns.kind == "valu" and vw & cns.reads: need, why = max(need, 1), "trans -> valu"
                    if p.kind == "trans" and cns.kind == "trans" and vw & cns.reads: need, why = max(need, 1), "trans -> trans(safe)"
                    if "permlane" in cns.mn and vw & cns.reads: need, why = max(need, 2), "valu -> permlane"
                    if ("readfirstlane" in cns.mn or "readlane" in cns.mn) and vw & cns.reads: need, why = max(need, 1), "valu -> readlane"
                    if sw & cns.reads: need, why = max(need, 2), "valu sgpr -> valu"
                if cns.kind in ("dma", "vload", "vstore") and sw & cns.reads: need, why = max(need, 5), "valu sgpr -> vmem"
                if cns.kind in ("salu", "branch") and sw & cns.reads: need, why = max(need, 4), "valu sgpr -> salu (safe)"
            if p.kind == "salu" and "m0" in p.writes and cns.kind == "dma": need, why = max(need, 1), "m0 -> dma"
            if p.kind == "vstore" and len(p.data) >= 3 and set(p.data) & cns.writes: need, why = max(need, 2), "store data WAR"
            if p.kind == "ds_write" and cns.kind in ("valu", "trans", "mfma") and (p.reads & cns.writes) and False: pass
            if d < need and need > 0:
                errs.append(f"HAZARD {why}: need {need} have {d}: [{i}] {p.text}  ->  [{j}] {cns.text}")
            i -= 1
    lg_q = []; vm_q = []
    for j, ins in enumerate(trace):
        if ins.kind == "wait":
            vm, lg = ins.waitcnts()
            if lg is not None:
                if any(x.kind == "smem" for x in lg_q) and lg != 0:
                    errs.append(f"counted lgkm wait with smem outstanding at [{j}]")
                while len(lg_q) > lg: lg_q.pop(0)
            if vm is not None:
                while len(vm_q) > vm: vm_q.pop(0)
            continue
        touched = ins.reads | ins.writes
        for o in lg_q:
            if o.writes & touched:
                errs.append(f"LGKM RAW/WAW: [{j}] {ins.text} touches regs of outstanding {o.text}")
        for o in vm_q:
            if o.writes & touched:
                errs.append(f"VM RAW/WAW: [{j}] {ins.text} touches regs of outstanding {o.text}")
        if ins.kind in ("ds_read", "ds_write", "smem"): lg_q.append(ins)
        if ins.kind in ("dma", "vload", "vstore"): vm_q.append(ins)
        if len(lg_q) > 15 + 16: pass
        if len(vm_q) > 63: errs.append(f"vmcnt overflow at [{j}]")
    lg_q = []; vm_q = []
    wr_state = {}
    rd_state = {}
    done_w = set(); done_r = set()
    for j, ins in enumerate(trace):
        if ins.kind == "wait":
            vm, lg = ins.waitcnts()
            if lg is not None:
                while len(lg_q) > lg:
                    x = lg_q.pop(0); done_w.add(x); done_r.add(x)
            if vm is not None:
                while len(vm_q) > vm:
                    x = vm_q.pop(0); done_w.add(x)
        elif ins.kind == "barrier":
            for s in wr_state: wr_state[s] = {x for x in wr_state[s] if x not in done_w}
            for s in rd_state: rd_state[s] = {x for x in rd_state[s] if x not in done_r}
        if "rd" in ins.attr:
            s = ins.attr["rd"]
            if ins.attr.get("private"):
                if any(x not in done_w for x in wr_state.get(s, ())): errs.append(f"LDS private RAW on slot {s} at [{j}] {ins.text}")
            elif wr_state.get(s): errs.append(f"LDS RAW on slot {s} at [{j}] {ins.text}: {len(wr_state[s])} writes not complete+barriered")
            rd_state.setdefault(s, set()).add(j)
        if "wr" in ins.attr:
            s = ins.attr["wr"]
            if rd_state.get(s): errs.append(f"LDS WAR on slot {s} at [{j}] {ins.text}: {len(rd_state[s])} reads not complete+barriered")
            for o in ins.attr.get("alias", ()):
                if wr_state.get(o): errs.append(f"LDS WAW on alias {o} of slot {s} at [{j}] {ins.text}")
                if rd_state.get(o): errs.append(f"LDS WAR on alias {o} of slot {s} at [{j}] {ins.text}")
            wr_state.setdefault(s, set()).add(j)
        if ins.kind in ("ds_read", "ds_write", "smem"): lg_q.append(j)
        if ins.kind in ("dma", "vload", "vstore"): vm_q.append(j)
    cur = None
    for j, ins in enumerate(trace):
        if "m0" in ins.writes: cur = ins.attr.get("m0tag")
        if ins.kind == "dma" and ins.attr.get("m0tag") != cur:
            errs.append(f"M0 mismatch at [{j}] {ins.text}: have {cur}")
    last = None
    for j, ins in enumerate(trace):
        if "scc" in ins.reads:
            if ins.mn.startswith("s_addc") and not (last is not None and last.mn == "s_add_u32" and "m0" not in last.writes and int(last.ops[0][1:]) + 1 == int(ins.ops[0][1:])):
                errs.append(f"SCC pairing at [{j}] {ins.text} after {last.text if last else None}")
            if (ins.kind == "branch" or ins.mn.startswith("s_cselect")) and not (last is not None and (last.mn.startswith("s_cmp") or last.mn.startswith("s_or_b64") or last.mn.startswith("s_andn2"))):
                errs.append(f"SCC pairing at [{j}] {ins.text} after {last.text if last else None}")
        if "scc" in ins.writes: last = ins
    if verbose:
        seen = set()
        for e in errs:
            k = re.sub(r"\[\d+\]", "", e)
            if k not in seen:
                seen.add(k); print(e)
        print(f"check: {len(errs)} problems in trace of {n} instrs")
    return errs
```

```python
import sys, math, struct
from kgen import I, AutoWait, resolve_waits, check_trace

NAME = "standalone__gqa_softmax__near_ridge"
PIECE = 1056
SLOT = 16 * PIECE
PAIR = 4 * SLOT
SLOTOFF = {"K0": 0, "K1": SLOT, "V0": 2 * SLOT, "V1": 3 * SLOT}
FLAGOFF = 2 * PAIR
LDS_BYTES = FLAGOFF + 256

Qr = lambda qb, ds: 16 + (qb * 4 + ds) * 4
Sr = lambda kb, qb: 80 + (kb * 4 + qb) * 4
Pr = lambda par, qb, ks: 144 + 32 * par + (qb * 2 + ks) * 4
NEGM = lambda qb: 208 + 4 * qb
ONES = 224
SUMM = {0: 228, 1: 232}
SUMA = {2: 236, 3: 237}
VK, VV, VO0, VO1, VLANE, VPF, VDUM = 238, 239, 240, 241, 242, 243, 252
Or = lambda db, qb: (db * 4 + qb) * 4
Kf = lambda kb, ds: 128 + (kb * 4 + ds) * 4
Vf = lambda db, ks: 192 + (db * 2 + ks) * 4
v4 = lambda r: f"v[{r}:{r+3}]"
v2 = lambda r: f"v[{r}:{r+1}]"
a4 = lambda r: f"a[{r}:{r+3}]"
a2 = lambda r: f"a[{r}:{r+1}]"
areg = lambda r, n: [f"a{i}" for i in range(r, r + n)]
vreg = lambda r, n: [f"v{i}" for i in range(r, r + n)]
MF = "v_mfma_f32_16x16x32_bf16"
CSCALE = (128 ** -0.5) * math.log2(math.e)
f2u = lambda x: struct.unpack("<I", struct.pack("<f", x))[0]
THR = 2.0 ** 30
OPT = {}

def m0_set(slot, j):
    return I(f"s_add_u32 m0, s24, {SLOTOFF[slot] + j * PIECE - 1024 * (j & 3)}", m0tag=(slot, j))
def dma(slot, j, alias=()):
    base = "s[16:17]" if slot[0] == "K" else "s[18:19]"
    return I(f"global_load_lds_dwordx4 v{VO0 + (j >> 2)}, {base} offset:{1024 * (j & 3)}{OPT['ld']}", wr=slot, m0tag=(slot, j), alias=alias)
def kread(slot, kb, ds, dst=None):
    d = Kf(kb, ds) if dst is None else dst
    return I(f"ds_read_b128 {a4(d)}, v{VK} offset:{SLOTOFF[slot] + kb * 256 + ds * 64}", rd=slot)
def vread(slot, db, ks, hf):
    return I(f"ds_read_b64_tr_b16 {a2(Vf(db, ks) + 2 * hf)}, v{VV} offset:{SLOTOFF[slot] + (2 * ks + hf) * 256 + db * 32}", rd=slot)
def qk(kb, qb, ds, kreg=None, czero=False):
    k = Kf(kb, ds) if kreg is None else kreg
    c = v4(Sr(kb, qb)) if ds else ("0" if czero else v4(NEGM(qb)))
    return I(f"{MF} {v4(Sr(kb, qb))}, {a4(k)}, {v4(Qr(qb, ds))}, {c}")
def pv(par, db, qb, ks):
    return I(f"{MF} {a4(Or(db, qb))}, {a4(Vf(db, ks))}, {v4(Pr(par, qb, ks))}, {a4(Or(db, qb))}")
def summ(par, qb, ks):
    return I(f"{MF} {v4(SUMM[qb])}, {v4(ONES)}, {v4(Pr(par, qb, ks))}, {v4(SUMM[qb])}")
def exp_i(n):
    b, r = n >> 2, n & 3
    x = Sr(b >> 2, b & 3) + r
    return I(f"v_exp_f32 v{x}, v{x}")
def items_after_exp(n):
    b, r = n >> 2, n & 3
    kb, qb = b >> 2, b & 3
    out = []
    if qb in SUMA: out.append(("add", kb, qb, r))
    if r & 1: out.append(("cvt", kb, qb, r >> 1))
    return out
def valu_item(it, par):
    k, kb, qb, r = it
    s = Sr(kb, qb)
    if k == "add":
        return I(f"v_add_f32 v{SUMA[qb]}, v{SUMA[qb]}, v{s + r}")
    d = Pr(par, qb, kb >> 1) + 2 * (kb & 1) + r
    return I(f"v_cvt_pk_bf16_f32 v{d}, v{s + 2 * r}, v{s + 2 * r + 1}")
def mfma_seq(par, with_qk=True):
    seq = []
    if with_qk:
        for kb in range(4):
            for qb in range(4):
                for ds in range(4): seq.append(qk(kb, qb, ds))
    for qb in SUMM:
        for ks in range(2): seq.append(summ(par, qb, ks))
    for db in range(8):
        for qb in range(4):
            for ks in range(2): seq.append(pv(par, db, qb, ks))
    return seq
def pf_load(n=0):
    return I(f"global_load_dword v{VDUM + n}, v{VPF}, s[50:51]{OPT['ld']}")
def pf_advance():
    return [I("s_add_u32 s46, s46, 0x8000"), I("s_min_u32 s46, s46, 0x3c000"), I("s_add_u32 s50, s48, s46"), I("s_addc_u32 s51, s49, 0")]
def xl_reduce(L, op, regs, tmps):
    for sw in ("v_permlane32_swap_b32", "v_permlane16_swap_b32"):
        for r, t in zip(regs, tmps): L.append(I(f"v_mov_b32 v{t}, v{r}"))
        if len(regs) < 3: L.append(I(f"s_nop {2 - len(regs)}"))
        for r, t in zip(regs, tmps): L.append(I(f"{sw} v{r}, v{t}"))
        for r, t in zip(regs, tmps): L.append(I(f"{op} v{r}, v{r}, v{t}"))

NG = 132
GA, GB, GEXIT = 20, 102, 100
KREADS = [(kb, ds) for kb in range(4) for ds in range(4)]
VREADS = [(db, ks, hf) for db in range(8) for ks in range(2) for hf in range(2)]

def gap_plan():
    ty = [None] * NG
    for g in range(GB + 1, NG - 1): ty[g] = "exp" if (g - GB) % 2 == 1 else "k"
    ty[NG - 1] = "spare"
    for g in range(0, 14): ty[g] = "k" if g % 2 == 0 else "exp"
    for g in (104, 112, 120, 128, 4): ty[g] = "dma"
    for g in range(14, GA): ty[g] = "exp"
    ty[16] = "dma"; ty[GA] = "bar"
    lo, hi, nm = GA + 1, 95, 42
    n = hi - lo + 1
    for i in range(n):
        ty[lo + i] = "v" if ((i + 1) * nm) // n > (i * nm) // n else "exp"
    def nearest(tgt):
        c = [g for g in range(lo, hi + 1) if ty[g] == "v"]
        return min(c, key=lambda g: (abs(g - tgt), g))
    for k in range(9): ty[nearest(24 + 8 * k)] = "dma"
    ty[nearest(36)] = "pf"
    for g in range(96, GB): ty[g] = "exp"
    ty[98] = "dma"; ty[GB] = "bar"
    cnt = {k: ty.count(k) for k in set(ty)}
    assert cnt == {"exp": 64, "k": 16, "v": 32, "dma": 16, "pf": 1, "bar": 2, "spare": 1}, cnt
    return ty

def build(opts):
    global OPT
    OPT.clear(); OPT.update({"ld": " nt", "st": " nt"}); OPT.update(opts)
    stamps = opts.get("stamps", False)
    ty = gap_plan()
    cyc = list(range(GB + 1, NG)) + list(range(0, GB + 1))
    kg = [g for g in cyc if ty[g] == "k"]; vg = [g for g in cyc if ty[g] == "v"]; dg = [g for g in cyc if ty[g] == "dma"]
    pfg = ty.index("pf")
    assert all(GA < g < GB for g in dg[8:]) and dg[7] < pfg < dg[8]
    expg = [g for g in range(9, NG) if ty[g] == "exp"] + [g for g in range(0, 9) if ty[g] == "exp"]
    expn = {g: n for n, g in enumerate(expg)}
    late = lambda g: g < 9
    def valu_sim():
        q = []
        for rnd in range(6):
            q = [(it, 1) for it, _ in q]
            carry_in = [it for it, _ in q]
            assign = {}
            for g in range(NG):
                lst = []
                if ty[g] in ("k", "v", "dma", "pf") and q: lst.append(q.pop(0))
                assign[g] = lst
                if ty[g] == "exp": q += [(it, 1 if late(g) else 0) for it in items_after_exp(expn[g])]
            carry_out = [it for it, _ in q]
        assert carry_in == carry_out
        return assign
    vassign = valu_sim()
    carry_items = [it for g in range(NG) for it, age in vassign[g] if age == 1]
    carry_exps = [expn[g] for g in expg if late(g)]
    lastc = max(g for g in range(NG) for it, age in vassign[g] if age == 1)
    for g in range(NG):
        for it, age in vassign[g]:
            if age == 1: assert g < 16 * it[1] + 4 * it[2] - 0 and g < 60, (g, it)
    if opts.get("verbose"): print("carry", carry_exps, carry_items, lastc, "".join({"exp": "e", "k": "K", "v": "V", "dma": "D", "pf": "P", "bar": "|", "spare": "_"}[t] for t in ty))

    def body(par):
        ms = mfma_seq(par)
        mem = {}; shadow = {}
        def put(g, ins):
            assert g not in shadow and ty[g] != "bar", g
            shadow[g] = ins
        for i, g in enumerate(kg): mem[g] = kread(f"K{par}" if g > GB else f"K{1-par}", *KREADS[i])
        for i, g in enumerate(vg): mem[g] = vread(f"V{par}", *VREADS[i])
        for i, g in enumerate(dg):
            slot = (f"V{par}" if g > GB else f"V{1-par}") if i < 8 else f"K{1-par}"
            mem[g] = dma(slot, i & 7); put(g - 1, m0_set(slot, i & 7))
        if par == 0:
            mem[pfg] = pf_load()
            for k, x in enumerate(pf_advance()): put(dg[8] + 1 + k, x)
        put(GA - 1, AutoWait(slot=f"V{par}", lg0=True))
        put(GB - 1, AutoWait(slot=f"K{par}", lg0=True))
        put(NG - 2, AutoWait(need=areg(Kf(0, 0), 32)))
        for db in range(5): put(66 + 8 * db if (67 + 8 * db) in shadow else 67 + 8 * db, AutoWait(need=areg(Vf(db, 0), 8)))
        g0 = dg[0] + 1
        put(g0, I("s_cmp_lt_u32 s25, 12")); put(g0 + 1, I("s_cselect_b32 s26, 0x4000, 0"))
        put(g0 + 2, I("s_add_u32 s16, s16, s26")); put(g0 + 3, I("s_addc_u32 s17, s17, 0"))
        put(g0 + 4, I("s_add_u32 s25, s25, 1"))
        g1 = dg[7] + 1
        put(g1, I("s_add_u32 s18, s18, 0x4000")); put(g1 + 1, I("s_addc_u32 s19, s19, 0"))
        if par == 0:
            put(GEXIT - 2, I("s_cmp_eq_u32 s25, 14")); put(GEXIT, I("s_cbranch_scc1 L_tail"))
        if par == 1: put(NG - 1, I("s_branch L_loop"))
        gaps = []
        for g in range(NG):
            gap = [ms[g]]
            if g in shadow: gap.append(shadow[g])
            if ty[g] == "bar": gap.append(I("s_barrier"))
            if g in mem: gap.append(mem[g])
            if ty[g] == "exp": gap.append(exp_i(expn[g]))
            for it, age in vassign[g]: gap.append(valu_item(it, par if age else 1 - par))
            gaps.append(gap)
        return gaps
    even = body(0); odd = body(1)
    flat = lambda gs: [x for g in gs for x in g]
    evenA = flat(even[:GEXIT]) + even[GEXIT][:2]
    evenB = even[GEXIT][2:] + flat(even[GEXIT + 1:])
    oddL = flat(odd)

    nexp_done = sum(1 for g in range(9, GEXIT) if ty[g] == "exp")
    done_items = [it for g in range(GEXIT) for it, age in vassign[g] if age == 0]
    q = [it for n in range(nexp_done) for it in items_after_exp(n) if it not in done_items]
    ms = mfma_seq(0)[GEXIT + 1:] + mfma_seq(1, with_qk=False)
    tail = []; n = nexp_done; vr = list(VREADS)
    for k in range(len(ms) + 1):
        G = GEXIT + k
        if k > 0:
            if G >= 132:
                pend = set()
                for it in q + [x for m in range(n, 64) for x in items_after_exp(m)]:
                    if it[0] == "cvt": pend |= valu_item(it, 1).writes
                assert not (pend & ms[k - 1].reads), (G, ms[k - 1].text)
            tail.append(ms[k - 1])
        if G == GEXIT + 1: tail.append(AutoWait(vm=0, lg0=True))
        if G == GEXIT + 2:
            tail.append(I("s_barrier")); continue
        if G >= 135 and (G - 135) % 8 == 0 and (G - 135) // 8 < 8:
            tail.append(AutoWait(need=areg(Vf((G - 135) // 8, 0), 8)))
        if n < 64:
            tail.append(exp_i(n)); q += items_after_exp(n); n += 1
            continue
        q.sort(key=lambda it: it[0] != "cvt")
        slots = 2
        ncvt = sum(1 for it in q if it[0] == "cvt")
        if vr and G >= 68 + 8 * vr[0][0] + 7 and (ncvt <= 131 - G or G > 124):
            tail.append(vread("V1", *vr.pop(0))); slots = 1
        for _ in range(slots):
            if q: tail.append(valu_item(q.pop(0), 1))
    assert not vr and not q

    def stamp(L, i):
        if stamps:
            L.append(I(f"s_memtime s[{60 + 2 * i}:{61 + 2 * i}]")); L.append(I("s_waitcnt lgkmcnt(0)"))
    head = []
    H = lambda t, **k: head.append(I(t, **k))
    H("s_cmp_ge_u32 s2, 0x100"); H("s_cbranch_scc1 L_end")
    if stamps:
        H("s_memrealtime s[56:57]"); H("s_memtime s[60:61]")
    H("s_load_dwordx4 s[4:7], s[0:1], 0"); H("s_load_dwordx4 s[8:11], s[0:1], 16")
    if stamps: H("s_load_dwordx2 s[54:55], s[0:1], 40")
    H("v_lshrrev_b32 v1, 6, v0"); H(f"v_and_b32 v{VLANE}, 63, v0")
    H("v_readfirstlane_b32 s12, v1")
    H("s_and_b32 s31, s2, 7"); H("s_lshl_b32 s31, s31, 3"); H("s_lshr_b32 s32, s2, 5"); H("s_add_u32 s31, s31, s32")
    H("s_lshr_b32 s15, s2, 3"); H("s_and_b32 s15, s15, 3"); H("s_lshl_b32 s33, s31, 2"); H("s_add_u32 s33, s33, s15")
    H("s_and_b32 s13, s12, 1"); H("s_lshr_b32 s14, s12, 1")
    H("s_lshl_b32 s34, s31, 19"); H("s_lshl_b32 s35, s14, 18"); H("s_add_u32 s34, s34, s35")
    H("s_lshl_b32 s35, s13, 13"); H("s_add_u32 s34, s34, s35")
    H("s_lshl_b32 s36, s33, 15"); H("s_lshl_b32 s35, s13, 14"); H("s_add_u32 s36, s36, s35")
    H("s_lshl_b32 s35, s14, 13"); H("s_add_u32 s36, s36, s35")
    H(f"s_mul_i32 s37, s14, {PAIR}"); H(f"s_mul_i32 s24, s13, {8 * PIECE}"); H("s_add_u32 s24, s24, s37")
    H(f"v_lshlrev_b32 v{VO0}, 4, v{VLANE}"); H(f"v_add_u32 v{VO1}, 0x1000, v{VO0}")
    H(f"v_lshlrev_b32 v{VPF}, 7, v{VLANE}")
    H("s_mov_b32 s27, 0")
    H("s_waitcnt lgkmcnt(0)")
    H("s_add_u32 s20, s6, s34"); H("s_addc_u32 s21, s7, 0")
    H("s_add_u32 s22, s8, s34"); H("s_addc_u32 s23, s9, 0")
    H("s_add_u32 s4, s4, s36"); H("s_addc_u32 s5, s5, 0")
    H("s_add_u32 s10, s10, s36"); H("s_addc_u32 s11, s11, 0")
    stamp(head, 1)

    P = []
    A = lambda t, **k: P.append(I(t, **k))
    def dma_tile(L, slot, js=range(8), adv=True, alias=()):
        for j in js:
            L.append(m0_set(slot, j)); L.append(I("s_nop 0")); L.append(dma(slot, j, alias))
        if adv:
            b = 16 if slot[0] == "K" else 18
            L.append(I(f"s_add_u32 s{b}, s{b}, 0x4000")); L.append(I(f"s_addc_u32 s{b+1}, s{b+1}, 0"))
    A("L_restart:")
    A("s_lshl_b32 s31, s15, 11")
    A(f"v_lshl_add_u32 v1, v{VLANE}, 5, s31")
    A("s_mov_b64 s[16:17], s[20:21]"); A("s_mov_b64 s[18:19], s[22:23]")
    A(f"global_load_dword v{VDUM}, v1, s[20:21]{OPT['ld']}")
    QT = 80
    for j in range(8):
        A(f"global_load_dwordx4 {v4(QT + 4 * j)}, v{VO0 + (j >> 2)}, s[4:5] offset:{1024 * (j & 3)}{OPT['ld']}")
    dma_tile(P, "K0", alias=("X",))
    A("v_add_u32 v2, 0x4000, v1"); A("v_add_u32 v3, 0x8000, v1")
    A(f"global_load_dword v{VDUM+1}, v2, s[20:21]{OPT['ld']}")
    A(f"global_load_dword v{VDUM+2}, v1, s[22:23]{OPT['ld']}")
    A(f"global_load_dword v{VDUM+3}, v3, s[20:21]{OPT['ld']}")
    A(f"global_load_dword v{VDUM-1}, v2, s[22:23]{OPT['ld']}")
    A(f"v_and_b32 v1, 15, v{VLANE}"); A(f"v_mul_u32_u24 v1, {PIECE}, v1"); A(f"v_lshrrev_b32 v2, 4, v{VLANE}")
    A("v_lshl_add_u32 v1, v2, 4, v1"); A(f"v_add_u32 v{VK}, s37, v1")
    A(f"s_mul_i32 s31, s13, {PAIR}"); A(f"s_add_u32 s31, s31, {SLOTOFF['V1']}"); A("s_lshl_b32 s32, s14, 9")
    A("s_add_u32 s33, s31, s32"); A("s_sub_u32 s34, s31, s32")
    A("v_add_u32 v12, s33, v1"); A("v_add_u32 v13, s34, v1")
    A(f"v_mul_u32_u24 v2, {PIECE}, v2"); A(f"v_and_b32 v3, 0xf0, v{VO0}"); A("v_add3_u32 v14, v2, v3, s33")
    A(f"v_lshrrev_b32 v1, 2, v{VLANE}"); A(f"v_mul_u32_u24 v1, {PIECE}, v1"); A(f"v_and_b32 v2, 3, v{VLANE}")
    A("v_lshl_add_u32 v1, v2, 3, v1"); A(f"v_add_u32 v{VV}, s37, v1")
    A("s_and_b32 s31, s15, 1"); A("s_cmp_eq_u32 s31, 0"); A("s_cselect_b32 s48, s20, s22"); A("s_cselect_b32 s49, s21, s23")
    A("s_lshr_b32 s32, s15, 1"); A("s_sub_u32 s32, s32, s31"); A("s_add_u32 s32, s32, 3"); A("s_lshl_b32 s46, s32, 14")
    A("s_add_u32 s50, s48, s46"); A("s_addc_u32 s51, s49, 0")
    for r in range(128): A(f"v_accvgpr_write_b32 a{r}, 0")
    for r in range(4): A(f"v_mov_b32 v{ONES + r}, 0x3f803f80")
    for r in range(228, 238): A(f"v_mov_b32 v{r}, 0")
    A(f"s_mov_b32 s28, {f2u(CSCALE):#x}"); A("s_mov_b32 s29, s28"); A("s_mov_b32 s25, 0")
    for j in range(8):
        P.append(AutoWait(needv=vreg(QT + 4 * j, 4)))
        if j == 0: stamp(P, 2)
        if j == 7: stamp(P, 3)
        for i in range(4):
            x = QT + 4 * j + i; t = 2 * i
            A(f"v_lshlrev_b32 v{t}, 16, v{x}"); A(f"v_and_b32 v{t+1}, 0xffff0000, v{x}")
        for i in range(4):
            t = 2 * i
            A(f"v_pk_mul_f32 {v2(t)}, {v2(t)}, s[28:29]")
        for i in range(4):
            x = QT + 4 * j + i; t = 2 * i
            A(f"v_cvt_pk_bf16_f32 v{x}, v{t}, v{t+1}")
        A(f"ds_write_b128 v14, {v4(QT + 4 * j)} offset:{(j & 3) * 4 * PIECE + (j >> 2) * 256}", wr="V1", alias=("T",))
    P.append(AutoWait(slot="K0", lg0=True)); A("s_barrier")
    stamp(P, 4)
    K0f = lambda kb, ds: 192 + (kb * 4 + ds) * 4
    def qread(qb, ds):
        return I(f"ds_read_b128 {v4(Qr(qb, ds))}, v{12 + (qb >> 1)} offset:{qb * 256 + ds * 64}", rd="V1")
    for ds in range(4):
        P.append(kread("K0", 0, ds, dst=K0f(0, ds))); P.append(qread(0, ds))
    for qb in range(1, 3):
        for ds in range(4): P.append(qread(qb, ds))
    rest = [qread(3, ds) for ds in range(4)] + [kread("K0", kb, ds, dst=K0f(kb, ds)) for kb in range(1, 4) for ds in range(4)]
    for qb in range(4):
        P.append(AutoWait(need=vreg(Qr(qb, 0), 16)))
        for ds in range(4):
            P.append(qk(0, qb, ds, kreg=K0f(0, ds), czero=True))
            if rest: P.append(rest.pop(0))
    dma_tile(P, "K1", alias=("X",))
    A("s_cmp_lg_u32 s27, 0"); A("s_cbranch_scc1 L_skipmax")
    start = len(P)
    for qb in range(4):
        s = Sr(0, qb)
        A(f"v_max3_f32 v{qb}, v{s}, v{s+1}, v{s+2}")
    for qb in range(4):
        A(f"v_max_f32 v{qb}, v{qb}, v{Sr(0, qb) + 3}")
    xl_reduce(P, "v_max_f32", [0, 1, 2, 3], [4, 5, 6, 7])
    for qb in range(4):
        for r in range(4): A(f"v_sub_f32 v{NEGM(qb) + r}, 0, v{qb}")
    skip = (start, len(P))
    A("L_skipmax:")
    A("s_waitcnt lgkmcnt(0)"); A("s_barrier")
    work = []
    subs = [I(f"v_add_f32 v{Sr(0, qb) + r}, v{NEGM(qb)}, v{Sr(0, qb) + r}") for qb in range(4) for r in range(4)]
    nv1 = sum(1 for g in dg[:8] if g > GB)
    dmas = [("V0", j) for j in range(8)] + [("K0", j) for j in range(8)] + [("V1", j) for j in range(nv1)]
    ms = [qk(kb, qb, ds, kreg=K0f(kb, ds)) for kb in range(1, 4) for qb in range(4) for ds in range(4)]
    n = 0; q = []; nexp = 64 - len(carry_exps)
    adv = []
    k1_at = 40
    for i in range(len(ms) + 200):
        if i < len(ms): P.append(ms[i])
        elif n >= nexp and not q and not dmas and not adv: break
        if adv: P.append(adv.pop(0))
        elif dmas and i % 2 == 0: P.append(m0_set(*dmas[0]))
        elif dmas and i % 2 == 1:
            sl, j = dmas.pop(0); P.append(dma(sl, j, alias=("X", "T")))
            if j == 7:
                b = 16 if sl[0] == "K" else 18
                adv = [I(f"s_add_u32 s{b}, s{b}, 0x4000"), I(f"s_addc_u32 s{b+1}, s{b+1}, 0")]
        if i == k1_at: P.append(AutoWait(slot="K1")); A("s_barrier")
        if i > k1_at and i - k1_at - 1 < sum(1 for g in kg if g > GB): P.append(kread("K1", *KREADS[i - k1_at - 1]))
        if subs:
            for _ in range(4): P.append(subs.pop(0))
            continue
        newq = []
        if n < nexp and (n < 16 or i >= 4 * ((n >> 2) - 4) + 3 + 3):
            P.append(exp_i(n)); newq = items_after_exp(n); n += 1
        if q: P.append(valu_item(q.pop(0), 0))
        if len(q) > 3: P.append(valu_item(q.pop(0), 0))
        q += [it for it in newq if it not in carry_items]
    P.append(pf_load(1)); P.extend(pf_advance())
    P.append(AutoWait(need=areg(Kf(0, 0), 32)))
    stamp(P, 5)

    E = []
    B = lambda t, **k: E.append(I(t, **k))
    stamp(E, 6)
    xl_reduce(E, "v_add_f32", [SUMA[2], SUMA[3]], [8, 9])
    B(f"s_mul_i32 s31, s13, {SLOT}"); B("s_add_u32 s32, s31, s37")
    B(f"s_xor_b32 s33, s14, 1"); B(f"s_mul_i32 s33, s33, {PAIR}"); B("s_add_u32 s33, s33, s31")
    B(f"v_add_u32 v10, s32, v{VO0}"); B(f"v_add_u32 v11, s33, v{VO0}")
    B(f"v_and_b32 v12, 0xf0, v{VO0}"); B("v_add_u32 v13, s33, v12"); B("v_add_u32 v12, s32, v12")
    i = 0
    for db in range(8):
        for qb in (2, 3):
            B(f"ds_write_b128 v10, {a4(Or(db, qb))} offset:{1024 * i}", wr="X", alias=("K0", "K1")); i += 1
    B(f"s_mov_b32 s30, {f2u(THR):#x}")
    B(f"v_cmp_nge_f32 s[38:39], s30, v{SUMM[0]}"); B(f"v_cmp_nge_f32 s[40:41], s30, v{SUMM[1]}")
    B(f"v_cmp_nge_f32 s[42:43], s30, v{SUMA[2]}"); B(f"v_cmp_nge_f32 s[44:45], s30, v{SUMA[3]}")
    B(f"v_mov_b32 v4, v{NEGM(2)}"); B(f"v_mov_b32 v5, v{NEGM(3)}"); B(f"v_mov_b32 v6, v{SUMA[2]}"); B(f"v_mov_b32 v7, v{SUMA[3]}")
    B("s_or_b64 s[38:39], s[38:39], s[40:41]"); B("s_or_b64 s[42:43], s[42:43], s[44:45]"); B("s_or_b64 s[38:39], s[38:39], s[42:43]")
    B("s_cselect_b32 s31, 1, 0"); B("s_lshl_b32 s38, s12, 2"); B(f"s_add_u32 s38, s38, {FLAGOFF}")
    B("v_mov_b32 v14, s38"); B("v_mov_b32 v15, s31")
    B("ds_write_b32 v14, v15", wr="F")
    B("ds_write_b128 v12, v[4:7] offset:16384", wr="X", alias=("K0", "K1"))
    OWN = lambda db, qb: 80 + (db * 2 + qb) * 4
    OTH = lambda db, qb: 144 + (db * 2 + qb) * 4
    for db in range(8):
        for qb in (0, 1):
            for r in range(4): B(f"v_accvgpr_read_b32 v{OWN(db, qb) + r}, a{Or(db, qb) + r}")
    B(f"v_mov_b32 v14, {FLAGOFF}")
    B("s_waitcnt lgkmcnt(0)"); B("s_barrier")
    B("ds_read_b128 v[0:3], v14", rd="F")
    B("ds_read_b128 v[4:7], v13 offset:16384", rd="X")
    for qb in (0, 1):
        for db in range(8):
            B(f"ds_read_b128 {v4(OTH(db, qb))}, v11 offset:{1024 * (2 * db + qb)}", rd="X")
    E.append(AutoWait(need=vreg(0, 8)))
    B("v_or_b32 v0, v0, v1"); B("v_or3_b32 v0, v0, v2, v3"); B("s_nop 0")
    B("v_readfirstlane_b32 s31, v0"); B("s_nop 3")
    B("s_andn2_b32 s31, s31, s27"); B("s_cbranch_scc1 L_fallback")
    E2 = []
    B = lambda t, **k: E2.append(I(t, **k))
    WO = lambda qb: 244 + 4 * qb
    WT = lambda qb: 246 + 4 * qb
    for qb in (0, 1): B(f"v_min_f32 v{8+qb}, v{NEGM(qb)}, v{4+qb}")
    for qb in (0, 1): B(f"v_sub_f32 v{qb}, v{8+qb}, v{NEGM(qb)}"); B(f"v_sub_f32 v{2+qb}, v{8+qb}, v{4+qb}")
    for r in range(4): B(f"v_exp_f32 v{r}, v{r}")
    for qb in (0, 1): B(f"v_mul_f32 v{8+qb}, v{qb}, v{SUMM[qb]}")
    for qb in (0, 1): B(f"v_fma_f32 v{8+qb}, v{2+qb}, v{6+qb}, v{8+qb}")
    for qb in (0, 1): B(f"v_rcp_f32 v{8+qb}, v{8+qb}")
    TS = 272
    B(f"s_add_u32 s32, s32, {2 * SLOT}")
    B(f"v_and_b32 v10, 15, v{VLANE}"); B(f"v_mul_u32_u24 v10, {TS}, v10"); B(f"v_lshrrev_b32 v11, 4, v{VLANE}")
    for qb in (0, 1): B(f"v_mul_f32 v{WO(qb)}, v{qb}, v{8+qb}"); B(f"v_mul_f32 v{WT(qb)}, v{2+qb}, v{8+qb}")
    B("v_lshl_add_u32 v10, v11, 3, v10"); B("v_add_u32 v10, s32, v10")
    B(f"v_mul_u32_u24 v11, {TS}, v11"); B(f"v_and_b32 v12, 0xf0, v{VO0}"); B("v_add3_u32 v11, v11, v12, s32")
    for qb in (0, 1):
        for db in range(8):
            E2.append(AutoWait(need=vreg(OTH(db, qb), 4)))
            o = 16 + 2 * (qb * 8 + db)
            for pr in range(2):
                x = OWN(db, qb) + 2 * pr
                B(f"v_pk_mul_f32 {v2(x)}, {v2(x)}, {v2(WO(qb))} op_sel_hi:[1,0]")
            for pr in range(2):
                x = OWN(db, qb) + 2 * pr; y = OTH(db, qb) + 2 * pr
                B(f"v_pk_fma_f32 {v2(x)}, {v2(y)}, {v2(WT(qb))}, {v2(x)} op_sel_hi:[1,0,1]")
            for pr in range(2):
                x = OWN(db, qb) + 2 * pr
                B(f"v_cvt_pk_bf16_f32 v{o + pr}, v{x}, v{x+1}")
            B(f"ds_write_b64 v10, {v2(o)} offset:{qb * 16 * TS + db * 32}", wr=f"T{qb}", alias=("V0", "V1"))
        B("s_waitcnt lgkmcnt(0)")
        for k in range(4):
            B(f"ds_read_b128 {v4(48 + 16 * qb + 4 * k)}, v11 offset:{(qb * 16 + 4 * k) * TS}", rd=f"T{qb}", private=True)
        if qb == 1:
            for k in range(8):
                E2.append(AutoWait(need=vreg(48 + 4 * k, 4)))
                B(f"global_store_dwordx4 v{VO0 + (k >> 2)}, {v4(48 + 4 * k)}, s[10:11] offset:{1024 * (k & 3)}{OPT['st']}")
    if stamps:
        stamp(E2, 7)
        B("s_waitcnt vmcnt(0)")
        stamp(E2, 8)
        B("s_memrealtime s[58:59]"); B("s_waitcnt lgkmcnt(0)")
        B("s_lshl_b32 s31, s2, 2"); B("s_add_u32 s31, s31, s12"); B("s_lshl_b32 s31, s31, 7")
        B("v_mov_b32 v1, s31")
        for k in range(0, 24, 4):
            for r in range(4): B(f"v_mov_b32 v{4 + r}, s{56 + k + r}")
            B(f"global_store_dwordx4 v1, v[4:7], s[54:55] offset:{k * 4}")
            B("s_nop 1")
    B("L_end:"); B("s_endpgm")

    F = []
    C = lambda t, **k: F.append(I(t, **k))
    C("L_fallback:")
    C("s_mov_b32 s27, 1"); C("s_mov_b64 s[16:17], s[20:21]"); C("s_mov_b32 s25, 0")
    for qb in range(4): C(f"v_mov_b32 v{244 + qb}, 0xff800000")
    C("s_waitcnt lgkmcnt(0)")
    FL = []
    C = lambda t, **k: FL.append(I(t, **k))
    C("L_fbloop:"); C("s_barrier")
    dma_tile(FL, "K0", alias=("X",))
    C("s_waitcnt vmcnt(0)"); C("s_barrier")
    for kb, ds in KREADS: FL.append(kread("K0", kb, ds))
    C("s_waitcnt lgkmcnt(0)")
    for kb in range(4):
        for qb in range(4):
            for ds in range(4): FL.append(qk(kb, qb, ds, czero=True))
    C("s_nop 7")
    for kb in range(4):
        for qb in range(4):
            s = Sr(kb, qb)
            C(f"v_max3_f32 v{244 + qb}, v{244 + qb}, v{s}, v{s+1}"); C(f"v_max3_f32 v{244 + qb}, v{244 + qb}, v{s+2}, v{s+3}")
    C("s_add_u32 s25, s25, 1"); C("s_cmp_lt_u32 s25, 16"); C("s_cbranch_scc1 L_fbloop")
    F2 = []
    xl_reduce(F2, "v_max_f32", [244, 245, 246, 247], [4, 5, 6, 7])
    for qb in range(4):
        for r in range(4): F2.append(I(f"v_sub_f32 v{NEGM(qb) + r}, 0, v{244 + qb}"))
    F2.append(I("s_barrier")); F2.append(I("s_branch L_restart"))

    LL = [I(".p2align 6"), I("L_loop:")]
    LT = [I("L_tail:")]
    main = []
    for r in range(7): main += evenA + evenB + oddL
    main += evenA + tail + E
    Pskip = P[:skip[0]] + P[skip[1]:]
    trace1 = head + P + main + E2
    trace2 = head + P + main + F + FL + FL + F2 + Pskip + main + E2
    resolve_waits(trace1); resolve_waits(trace2)
    e1 = check_trace(trace1); e2 = check_trace(trace2)
    prog = head + P + LL + evenA + evenB + oddL + LT + tail + E + E2 + F + FL + F2
    return prog, e1 + e2

def emit(prog, path, kname):
    hdr = open("cdna_kernels/" + NAME + ".s.ref").read().split("; Override launch")[0]
    out = [hdr.rstrip("\n")]
    out.append(f"; @launch grid=(256,1,1) block=(256,1,1) lds={LDS_BYTES}")
    out.append('.amdgcn_target "amdgcn-amd-amdhsa--gfx950"')
    out.append(f".text\n.globl {kname}\n.p2align 8\n.type {kname},@function\n{kname}:")
    for ins in prog:
        out.append(ins.text if ins.kind == "label" else "    " + ins.text)
    out.append('.section .rodata,"a"\n.p2align 6')
    out.append(f".amdhsa_kernel {kname}")
    out.append("  .amdhsa_next_free_vgpr 512\n  .amdhsa_next_free_sgpr 102\n  .amdhsa_accum_offset 256\n  .amdhsa_group_segment_fixed_size 0\n  .amdhsa_kernarg_size 48\n  .amdhsa_user_sgpr_count 2\n  .amdhsa_user_sgpr_kernarg_segment_ptr 1\n  .amdhsa_system_sgpr_workgroup_id_x 1\n.end_amdhsa_kernel")
    open(path, "w").write("\n".join(out) + "\n")

if __name__ == "__main__":
    prog, errs = build({"verbose": True})
    emit(prog, "v2.s", NAME + "_kernel")
    prog, errs2 = build({"stamps": True})
    emit(prog, "v2_stamps.s", NAME + "_kernel")
    prog, errs2 = build({"stamps": True, "st": ""})
    emit(prog, "v2_st0_stamps.s", NAME + "_kernel")
    prog, errs2 = build({"st": ""})
    emit(prog, "v2_st0.s", NAME + "_kernel")
    print("errors", len(errs), len(errs2))
```
